```python
import torch

def _softmax(x, axis=-1):
    return torch.softmax(x, dim=axis)
def _gelu(x):
    return torch.nn.functional.gelu(x, approximate="tanh")
def _silu(x):
    return torch.nn.functional.silu(x)
def _sigmoid(x):
    return torch.sigmoid(x)
def _layernorm(x, axis=-1, eps=1e-5):
    m = x.mean(dim=axis, keepdim=True)
    v = x.var(dim=axis, keepdim=True, unbiased=False)
    return (x - m) / torch.sqrt(v + eps)
def _scatter_add(tgt, idx, src, axis=0):
    return tgt.clone().index_add_(axis, idx, src)
def _segment_sum(src, seg, n):
    out = torch.zeros((n,) + src.shape[1:], dtype=src.dtype)
    return out.index_add_(0, seg, src)
def _pad(x, pw):
    flat = tuple(v for pair in reversed(pw) for v in pair)
    return torch.nn.functional.pad(x, flat)

kernel_name = 'gated_mix__linear_kernel_hedgehog__ssm_conv_s4__prompt'

def setup_inputs():

    _w = (lambda a: (lambda t: t.to(torch.bfloat16) if t.is_floating_point() else t)(torch.as_tensor(a)))
    def _A_setup():
        B, S, D, H = 1, 2048, 512, 32
        Dh = D // H
        return {
            "x": _w((lambda *s: torch.randn(*s, dtype=torch.bfloat16) * 0.05)(B, S, D)),
            "wqkv": _w((lambda *s: torch.randn(*s, dtype=torch.bfloat16) * 0.8)(D, 3 * D)),
            "w_phi": _w((lambda *s: torch.randn(*s, dtype=torch.bfloat16) * 0.8)(H, Dh, Dh) * (Dh ** -0.5)),
            "wo": _w((lambda *s: torch.randn(*s, dtype=torch.bfloat16) * 0.05)(D, D)),
        }
    _A_in = _A_setup()

    def _B_setup():
        B, L, D, N = 1, 2048, 512, 128
        A_re = -(lambda _x: torch.exp(torch.as_tensor(_x)))((lambda *s: torch.randn(*s, dtype=torch.bfloat16) * 3.2)(D, N))
        A_im = torch.pi * (lambda *s: torch.randn(*s, dtype=torch.bfloat16) * 0.05)(D, N)
        B_re = (lambda *s: torch.randn(*s, dtype=torch.bfloat16) * 0.2)(D, N)
        B_im = (lambda *s: torch.randn(*s, dtype=torch.bfloat16) * 0.2)(D, N)
        C_re = (lambda *s: torch.randn(*s, dtype=torch.bfloat16) * 0.2)(D, N)
        C_im = (lambda *s: torch.randn(*s, dtype=torch.bfloat16) * 0.2)(D, N)
        log_dt = (lambda *s: torch.randn(*s, dtype=torch.bfloat16) * 0.05)(D) * 0.5 - 4.0
        Dskip = (lambda *s: torch.randn(*s, dtype=torch.bfloat16) * 0.05)(D)
        return {
            "u": _w((lambda *s: torch.randn(*s, dtype=torch.bfloat16) * 0.05)(B, L, D)),
            "A_re": _w(A_re),
            "A_im": _w(A_im),
            "B_re": _w(B_re),
            "B_im": _w(B_im),
            "C_re": _w(C_re),
            "C_im": _w(C_im),
            "log_dt": _w(log_dt),
            "Dskip": _w(Dskip),
        }
    _B_in = _B_setup()

    return {
        "A_x": _A_in["x"],
        "A_wqkv": _A_in["wqkv"],
        "A_w_phi": _A_in["w_phi"],
        "A_wo": _A_in["wo"],
        "B_u": _B_in["u"],
        "B_A_re": _B_in["A_re"],
        "B_A_im": _B_in["A_im"],
        "B_B_re": _B_in["B_re"],
        "B_B_im": _B_in["B_im"],
        "B_C_re": _B_in["C_re"],
        "B_C_im": _B_in["C_im"],
        "B_log_dt": _B_in["log_dt"],
        "B_Dskip": _B_in["Dskip"],
        "gate_w": _w((lambda *s: torch.randn(*s, dtype=torch.bfloat16) * 0.05)(512) * 16.0),
    }

def reference(A_x, A_wqkv, A_w_phi, A_wo, B_u, B_A_re, B_A_im, B_B_re, B_B_im, B_C_re, B_C_im, B_log_dt, B_Dskip, gate_w):
    def _A_ref(x, wqkv, w_phi, wo):
        B, S, D = x.shape
        H = 32; Dh = D // H
        qkv = (lambda x, *d: x.permute(*d))((x @ wqkv).reshape(B, S, 3, H, Dh), 2, 0, 3, 1, 4)
        q, k, v = qkv[0], qkv[1], qkv[2]
        pq = torch.einsum("bhsd,hdf->bhsf", q, w_phi)
        pk = torch.einsum("bhsd,hdf->bhsf", k, w_phi)
        phi_q = torch.concatenate([_softmax(pq, axis=-1), _softmax(-pq, axis=-1)], axis=-1)
        phi_k = torch.concatenate([_softmax(pk, axis=-1), _softmax(-pk, axis=-1)], axis=-1)
        kv = torch.einsum("bhsf,bhsd->bhfd", phi_k, v)
        z  = torch.einsum("bhsf->bhf", phi_k)
        num = torch.einsum("bhqf,bhfd->bhqd", phi_q, kv)
        den = torch.einsum("bhqf,bhf->bhq", phi_q, z)[..., None] + 1e-6
        o = num / den
        return (lambda x, *d: x.permute(*d))(o, 0, 2, 1, 3).reshape(B, S, D) @ wo

    def _B_ref(u, A_re, A_im, B_re, B_im, C_re, C_im, log_dt, Dskip):
        Bsz, L, D = u.shape
        dt = torch.exp(log_dt)[:, None]
        A = A_re + 1j * A_im
        Bc = B_re + 1j * B_im
        Cc = C_re + 1j * C_im
        logdA = dt * A
        dB = dt * Bc
        l = (lambda x, dt: x.to(dt))(torch.arange(L), A_re.dtype)
        P = torch.exp(logdA[:, :, None] * l[None, None, :])
        K = torch.einsum("dn,dnl,dn->dl", Cc, P, dB).real
        L2 = 2 * L
        Kp = _pad(K, ((0, 0), (0, L)))
        up = (lambda x, *d: x.permute(*d))(u, 0, 2, 1)
        up = _pad(up, ((0, 0), (0, 0), (0, L)))
        Kf = (lambda x, axes=(-2,-1): torch.fft.rfft2(x.float(), dim=axes))(Kp[:, None, :], axes=(-2, -1))
        Uf = (lambda x, axes=(-2,-1): torch.fft.rfft2(x.float(), dim=axes))(up[:, :, None, :], axes=(-2, -1))
        Yf = Uf * Kf[None, :, :, :]
        y = (lambda x, s, axes=(-2,-1): torch.fft.irfft2(x, s=s, dim=axes).to(torch.bfloat16))(Yf, (1, L2), axes=(-2, -1))[:, :, 0, :L]
        y = (lambda x, *d: x.permute(*d))(y, 0, 2, 1) + u * Dskip[None, None, :]
        return y

    x = A_x
    g = _sigmoid((x * gate_w).sum(-1, keepdims=True))
    a = _A_ref(x, A_wqkv, A_w_phi, A_wo)
    b = _B_ref(x, B_A_re, B_A_im, B_B_re, B_B_im, B_C_re, B_C_im, B_log_dt, B_Dskip)
    return g * a + (1 - g) * b
```

```python
import re

TRANS = ("v_exp_f32","v_log_f32","v_rcp_f32","v_rsq_f32","v_sqrt_f32","v_sin_f32","v_cos_f32")
REG_RE = re.compile(r"^(-|abs\()?([vsa])(?:(\d+)|\[(\d+):(\d+)\])\)?$")

def regs_of(tok):
    tok = tok.strip()
    if tok in ("vcc",): return [("s","vcc")]
    if tok in ("exec",): return [("s","exec")]
    if tok == "m0": return [("s","m0")]
    m = REG_RE.match(tok)
    if not m: return []
    k = m.group(2)
    if m.group(3) is not None: return [(k,int(m.group(3)))]
    return [(k,i) for i in range(int(m.group(4)), int(m.group(5))+1)]

class Ins:
    __slots__=("text","op","kind","wr","rd","rdA","rdC","passes","dpp","states","wide_store_data","is_label","lds_dma","sgpr_rd")
    def __init__(s, text):
        s.text=text; s.wr=[]; s.rd=[]; s.rdA=[]; s.rdC=[]; s.passes=0; s.dpp=False; s.states=1
        s.wide_store_data=[]; s.is_label=False; s.lds_dma=False
        t = text.split(";")[0].strip()
        if not t: s.kind="none"; s.op=""; s.states=0; return
        if t.endswith(":"): s.kind="label"; s.op=""; s.is_label=True; s.states=0; return
        if t.startswith("."): s.kind="none"; s.op=""; s.states=0; return
        parts = t.split(None,1); op = parts[0]; s.op=op
        rest = parts[1] if len(parts)>1 else ""
        ops=[]; depth=0; cur=""
        for ch in rest:
            if ch in "[(": depth+=1
            if ch in "])": depth-=1
            if ch=="," and depth==0: ops.append(cur.strip()); cur=""
            else: cur+=ch
        if cur.strip(): ops.append(cur.strip())
        mods=""
        if ops:
            last = ops[-1].split(None,1)
            ops[-1]=last[0]; mods = last[1] if len(last)>1 else ""
        R = [regs_of(o) for o in ops]
        base = re.sub(r"_(e32|e64|dpp|sdwa)$","",op)
        if op=="s_nop": s.kind="salu"; s.states=int(ops[0],0)+1; return
        if op.startswith("v_mfma"):
            s.kind="mfma"; s.wr=R[0]; s.rdA=R[1]+R[2]; s.rdC=R[3]; s.rd=s.rdA+s.rdC
            s.passes = 8 if "32x32" in op else 4
            return
        if op.startswith("v_"):
            s.kind = "trans" if base in TRANS else "valu"
            s.dpp = ("dpp" in op) or ("row_" in mods) or ("quad_perm" in mods) or ("wave_" in mods)
            if base.startswith("v_cmp"):
                s.wr=R[0]; s.rd=sum(R[1:],[])
                if base.startswith("v_cmpx"): s.wr = s.wr+[("s","exec")]
            elif base in ("v_readfirstlane_b32","v_readlane_b32"):
                s.wr=R[0]; s.rd=sum(R[1:],[]); s.kind="readlane"
            elif base.startswith("v_permlane"):
                s.wr=R[0]+R[1]; s.rd=R[0]+R[1]; s.kind="permlane"
            elif base in ("v_add_co_u32","v_sub_co_u32","v_addc_co_u32"):
                s.wr=R[0]+R[1]; s.rd=sum(R[2:],[])
            else:
                s.wr=R[0]; s.rd=sum(R[1:],[])
                if base in ("v_fmac_f32","v_writelane_b32","v_dot2c_f32_bf16") or s.dpp: s.rd = s.rd+R[0]
            return
        if op.startswith("ds_"):
            s.kind="ds"
            if op.startswith("ds_read") or op.startswith("ds_bpermute") or op.startswith("ds_swizzle"):
                s.wr=R[0]; s.rd=sum(R[1:],[])
            else: s.rd=sum(R,[])
            return
        if op.startswith("buffer_") or op.startswith("global_"):
            s.kind="vmem"
            lds = re.search(r"\blds\b", mods) is not None or "_lds_" in op
            s.lds_dma = lds
            if "load" in op and not lds:
                s.wr=R[0]; s.rd=sum(R[1:],[])
            elif "atomic" in op and "sc0" in mods:
                s.wr=R[0]; s.rd=sum(R,[])
            else:
                s.rd=sum(R,[])
                if ("store" in op) and ("x4" in op or "x3" in op):
                    s.wide_store_data = R[0] if op.startswith("buffer_") else R[1]
            if lds: s.rd = s.rd+[("s","m0")]
            return
        if op.startswith("s_"):
            s.kind="salu"
            if op.startswith("s_cmp") or op.startswith("s_cbranch") or op in ("s_branch","s_waitcnt","s_barrier","s_endpgm","s_sleep","s_setprio"):
                s.rd=sum(R,[])
                if op.startswith("s_cbranch") or op=="s_branch": s.kind="branch"
            else:
                s.wr=R[0] if R else []; s.rd=sum(R[1:],[])
                if "saveexec" in op: s.wr = s.wr+[("s","exec")]
            return
        raise ValueError("unknown instr: "+text)

def need(p, c):
    n=0
    pw=set(p.wr);
    valu_like = ("valu","trans","readlane","permlane")
    cv = c.kind in valu_like
    if p.kind in valu_like:
        vw = {r for r in pw if r[0] in "va"}
        sw = {r for r in pw if r[0]=="s"}
        if p.op.startswith("v_dot") and c.op!=p.op and vw & (set(c.rd)|set(c.wr)): n=max(n,3)
        if c.kind=="mfma" and vw & set(c.rd): n=max(n,2)
        if c.kind=="mfma" and ("s","exec") in sw: n=max(n,4)
        if cv and c.dpp and vw & set(c.rd): n=max(n,2)
        if cv and c.dpp and ("s","exec") in sw: n=max(n,5)
        if c.kind=="readlane" and vw & set(c.rd): n=max(n,1)
        if c.kind=="readlane" and sw & set(c.rd): n=max(n,4)
        if c.kind in("readlane","permlane") and ("s","exec") in sw: n=max(n,4)
        if c.kind=="permlane" and vw & set(c.rd): n=max(n,2)
        if p.kind=="trans" and cv and c.kind!="trans" and vw & set(c.rd): n=max(n,1)
        if p.kind=="trans" and c.kind in("ds","vmem") and vw & set(c.rd): n=max(n,1)
        if c.kind=="vmem" and sw & set(c.rd): n=max(n,5)
        if cv and sw & set(c.rd): n=max(n,2)
        if c.kind in("salu","branch") and (sw & set(c.rd) or (c.op in("s_cbranch_vccz","s_cbranch_vccnz") and ("s","vcc") in sw)): n=max(n,2)
    if p.kind=="mfma":
        d=set(p.wr)
        big = {4:8,8:12}[p.passes]
        if c.kind=="mfma":
            if d & set(c.rdA): n=max(n,big)
            if d & set(c.rdC):
                if not (c.rdC==p.wr and c.passes==p.passes): n=max(n,{4:6,8:10}[p.passes])
            elif d & set(c.wr): n=max(n,big)
        elif cv or c.kind in("ds","vmem"):
            if d & (set(c.rd)|set(c.wr)): n=max(n,big)
        if cv and set(p.rdC) & set(c.wr): n=max(n,{4:3,8:7}[p.passes])
    if p.kind=="vmem" and p.wide_store_data:
        if set(p.wide_store_data) & set(c.wr): n=max(n, 2 if cv else 1)
    if p.kind=="salu" and ("s","m0") in pw and c.lds_dma: n=max(n,1)
    return n

class Asm:
    def __init__(s): s.ins=[]
    def __call__(s, text):
        for line in text.strip("\n").split("\n"):
            line=line.strip()
            if not line: continue
            s.emit(line)
    def emit(s, line):
        c = Ins(line)
        if c.kind not in ("none","label"):
            dist=0; req=0
            for p in reversed(s.ins):
                if dist>=20: break
                if p.kind=="label":
                    continue
                r = need(p,c)
                if r-dist>req: req=r-dist
                dist+=p.states
            while req>0:
                k=min(req,16); s.ins.append(Ins(f"s_nop {k-1}")); req-=k
        s.ins.append(c)
    def text(s):
        out=[]
        for i in s.ins:
            out.append(i.text if (i.is_label or i.text.startswith(".")) else "    "+i.text)
        return "\n".join(out)+"\n"

def vr(a,n=1): return f"v{a}" if n==1 else f"v[{a}:{a+n-1}]"
def ar(a,n=1): return f"a{a}" if n==1 else f"a[{a}:{a+n-1}]"
def sr(a,n=1): return f"s{a}" if n==1 else f"s[{a}:{a+n-1}]"
```

```python
import sys, math
sys.path.insert(0, "dev")
from asmlib import *

NAME = "gated_mix__linear_kernel_hedgehog__ssm_conv_s4__prompt"
XT, YT, PHIQ, WOP, KV, GOFF = 0, 2<<20, 4<<20, 8<<20, 9<<20, (9<<20)+(512<<10)
WS_BYTES = 10<<20
KVH = 2176
LOG2E = 0x3fb8aa3b
SPIN_MAX = 200000
def f2u(x):
    import struct
    return struct.unpack("<I", struct.pack("<f", x))[0]

P_X,P_W,P_PHI,P_WO,P_U,P_ARE,P_AIM,P_BRE,P_BIM,P_CRE,P_CIM,P_LDT,P_DSK,P_GW,P_OUT,P_DBG,P_WS = [16+2*i for i in range(17)]
R_X,R_W,R_WS,R_DBG = 52,56,60,64

class VM:
    def __init__(s): s.q=[]
    def issue(s, tag): s.q.append(tag)
    def wait(s, A, tag):
        idx = max(i for i,t in enumerate(s.q) if t==tag)
        n = len(s.q)-1-idx
        assert n<=63, n
        A(f"s_waitcnt vmcnt({n})")
        s.q = s.q[idx+1:]
    def waitall(s, A):
        A("s_waitcnt vmcnt(0)"); s.q=[]

def srd(A, r, p, n):
    A(f"s_mov_b32 s{r}, s{p}\ns_mov_b32 s{r+1}, s{p+1}\ns_mov_b32 s{r+2}, {hex(n)}\ns_mov_b32 s{r+3}, 0x20000")

def load_ptrs(A):
    A("""
    s_load_dwordx16 s[16:31], s[0:1], 0
    s_load_dwordx16 s[32:47], s[0:1], 64
    s_load_dwordx2 s[48:49], s[0:1], 128
    """)

def softmax16(A, p, dst, vL, t):
    m0,m1 = t, t+1
    A(f"v_max3_f32 v{m0}, v{p}, v{p+1}, v{p+2}")
    A(f"v_max3_f32 v{m1}, v{p+3}, v{p+4}, v{p+5}")
    A(f"v_max3_f32 v{m0}, v{m0}, v{p+6}, v{p+7}")
    A(f"v_max3_f32 v{m1}, v{m1}, v{p+8}, v{p+9}")
    A(f"v_max3_f32 v{m0}, v{m0}, v{p+10}, v{p+11}")
    A(f"v_max3_f32 v{m1}, v{m1}, v{p+12}, v{p+13}")
    A(f"v_max3_f32 v{m0}, v{m0}, v{p+14}, v{p+15}")
    A(f"v_max_f32 v{m0}, v{m0}, v{m1}")
    A(f"v_mul_f32 v{m0}, v{vL}, v{m0}")
    for i in range(0,16,2):
        A(f"v_pk_fma_f32 {vr(p+i,2)}, {vr(p+i,2)}, {vr(vL,2)}, {vr(m0,2)} op_sel_hi:[1,0,0] neg_lo:[0,0,1] neg_hi:[0,0,1]")
    for i in range(16):
        A(f"v_exp_f32 v{p+i}, v{p+i}")
    s0,s1 = t+2, t+4
    A(f"v_pk_add_f32 {vr(s0,2)}, {vr(p,2)}, {vr(p+2,2)}")
    A(f"v_pk_add_f32 {vr(s1,2)}, {vr(p+4,2)}, {vr(p+6,2)}")
    A(f"v_pk_add_f32 {vr(s0,2)}, {vr(s0,2)}, {vr(p+8,2)}")
    A(f"v_pk_add_f32 {vr(s1,2)}, {vr(s1,2)}, {vr(p+10,2)}")
    A(f"v_pk_add_f32 {vr(s0,2)}, {vr(s0,2)}, {vr(p+12,2)}")
    A(f"v_pk_add_f32 {vr(s1,2)}, {vr(s1,2)}, {vr(p+14,2)}")
    A(f"v_pk_add_f32 {vr(s0,2)}, {vr(s0,2)}, {vr(s1,2)}")
    A(f"v_add_f32 v{s0}, v{s0}, v{s0+1}")
    A(f"v_rcp_f32 v{s0}, v{s0}")
    for i in range(0,16,2):
        A(f"v_pk_mul_f32 {vr(p+i,2)}, {vr(p+i,2)}, {vr(s0,2)} op_sel_hi:[1,0]")
    for i in range(8):
        A(f"v_cvt_pk_bf16_f32 v{dst+i}, v{p+2*i}, v{p+2*i+1}")

def gemm_role(A):
    vm = VM()
    sXCD,sJ,sRBL,sHGL,sRB,sHG,sROT,sW,sT0,sT1,sC,sM0,sRH,sHP,sXO,sWO_ = 3,4,5,6,7,8,9,10,11,12,13,14,15,50,51,68
    sLO, sHI = 70, 72
    vLANE,vX0,vX1,vW = 1,2,3,4
    vXA = 5
    vWA = 9
    vT = 11
    vPH = 12
    vAK, vAV, vWF, vP0, vP1, vM, vXF = 20, 36, 52, 84, 100, 116, 128
    SLOT = 24576
    A(f"""
    s_and_b32 s{sXCD}, s2, 7
    s_lshr_b32 s{sJ}, s2, 3
    s_and_b32 s{sRBL}, s{sJ}, 7
    s_lshr_b32 s{sHGL}, s{sJ}, 3
    s_lshr_b32 s{sRB}, s{sXCD}, 1
    s_lshl_b32 s{sRB}, s{sRB}, 3
    s_add_u32 s{sRB}, s{sRB}, s{sRBL}
    s_and_b32 s{sHG}, s{sXCD}, 1
    s_lshl_b32 s{sHG}, s{sHG}, 2
    s_add_u32 s{sHG}, s{sHG}, s{sHGL}
    s_lshl_b32 s{sROT}, s{sHGL}, 1
    s_add_u32 s{sROT}, s{sROT}, s{sRBL}
    s_and_b32 s{sROT}, s{sROT}, 7
    v_lshrrev_b32 v{vT}, 6, v0
    v_and_b32 v{vLANE}, 63, v0
    v_readfirstlane_b32 s{sW}, v{vT}
    v_lshrrev_b32 v{vM}, 3, v{vLANE}          ; r8
    v_and_b32 v{vM+1}, 7, v{vLANE}            ; pos
    v_lshrrev_b32 v{vM+2}, 1, v{vM}           ; r8>>1
    v_xor_b32 v{vM+3}, v{vM+1}, v{vM+2}       ; x chunk
    v_lshlrev_b32 v{vM+3}, 4, v{vM+3}
    v_lshl_add_u32 v{vX0}, v{vM}, 10, v{vM+3}
    v_and_b32 v{vM+2}, 1, v{vM+2}
    v_lshlrev_b32 v{vM+2}, 2, v{vM+2}
    v_xor_b32 v{vM+3}, v{vM+1}, v{vM+2}       ; w chunk
    v_lshlrev_b32 v{vM+3}, 4, v{vM+3}
    v_mul_u32_u24 v{vW}, 3072, v{vM}
    v_add_u32 v{vW}, v{vW}, v{vM+3}
    s_and_b32 s{sRH}, s{sW}, 1
    s_lshr_b32 s{sHP}, s{sW}, 1
    s_lshl_b32 s{sT0}, s{sRB}, 16
    s_lshl_b32 s{sT1}, s{sW}, 14
    s_add_u32 s{sT0}, s{sT0}, s{sT1}
    v_add_u32 v{vX0}, s{sT0}, v{vX0}
    v_xor_b32 v{vX1}, 64, v{vX0}
    v_add_u32 v{vX1}, {8192-1024}, v{vX1}
    s_mul_i32 s{sT0}, s{sW}, {16*3072}
    s_lshl_b32 s{sT1}, s{sHG}, 7
    s_add_u32 s{sT0}, s{sT0}, s{sT1}
    v_add_u32 v{vW}, s{sT0}, v{vW}
    s_lshl_b32 s{sM0}, s{sW}, 11
    s_waitcnt lgkmcnt(0)
    """)
    srd(A, R_X, P_X, 2<<20); srd(A, R_W, P_W, 512*3072)
    def issue_stage(i):
        slot = (i%3)*SLOT
        if i < 8:
            A(f"""
            s_add_u32 s{sC}, s{sROT}, {i}
            s_and_b32 s{sC}, s{sC}, 7
            s_lshl_b32 s{sXO}, s{sC}, 7
            s_mul_i32 s{sWO_}, s{sC}, {64*3072}
            s_add_u32 m0, s{sM0}, {slot}
            s_add_u32 s{sT0}, s{sWO_}, 1024
            buffer_load_dwordx4 v{vX0}, s[{R_X}:{R_X+3}], s{sXO} offen lds
            buffer_load_dwordx4 v{vX1}, s[{R_X}:{R_X+3}], s{sXO} offen offset:1024 lds
            s_add_u32 m0, s{sM0}, {slot+8192}
            s_add_u32 s{sT1}, s{sWO_}, {1024+24576-1024}
            buffer_load_dwordx4 v{vW}, s[{R_W}:{R_W+3}], s{sT0} offen lds
            buffer_load_dwordx4 v{vW}, s[{R_W}:{R_W+3}], s{sT1} offen offset:1024 lds
            s_add_u32 m0, s{sM0}, {slot+16384}
            s_add_u32 s{sT0}, s{sWO_}, 2048
            s_add_u32 s{sT1}, s{sWO_}, {2048+24576-1024}
            buffer_load_dwordx4 v{vW}, s[{R_W}:{R_W+3}], s{sT0} offen lds
            buffer_load_dwordx4 v{vW}, s[{R_W}:{R_W+3}], s{sT1} offen offset:1024 lds
            """)
            for _ in range(6): vm.issue(("st",i))
        else:
            for q in range(3):
                ci = (i-8)*3+q
                if ci>7: break
                A(f"""
                s_add_u32 s{sC}, s{sROT}, {ci}
                s_and_b32 s{sC}, s{sC}, 7
                s_mul_i32 s{sWO_}, s{sC}, {64*3072}
                s_add_u32 m0, s{sM0}, {slot+8192*q}
                s_add_u32 s{sT1}, s{sWO_}, {24576-1024}
                buffer_load_dwordx4 v{vW}, s[{R_W}:{R_W+3}], s{sWO_} offen lds
                buffer_load_dwordx4 v{vW}, s[{R_W}:{R_W+3}], s{sT1} offen offset:1024 lds
                """)
                vm.issue(("st",i)); vm.issue(("st",i))
    issue_stage(0)
    A(f"""
    v_and_b32 v{vM}, 31, v{vLANE}             ; m
    v_lshrrev_b32 v{vM+1}, 3, v{vM}
    v_lshlrev_b32 v{vM+1}, 2, v{vM+1}
    v_and_b32 v{vM+2}, 3, v{vM}
    v_add_u32 v{vM+1}, v{vM+1}, v{vM+2}       ; f
    v_lshlrev_b32 v{vM+1}, 1, v{vM+1}
    v_lshrrev_b32 v{vM+2}, 5, v{vLANE}        ; h
    v_lshl_add_u32 v{vM+1}, v{vM+2}, 7, v{vM+1}
    s_lshl_b32 s{sT0}, s{sHG}, 11
    s_lshl_b32 s{sT1}, s{sHP}, 10
    s_add_u32 s{sT0}, s{sT0}, s{sT1}
    v_add_u32 v{vM+1}, s{sT0}, v{vM+1}
    """)
    for hd in range(2):
        for j in range(8):
            off = hd*512 + (j*32 if j<4 else 256+(j-4)*32)
            A(f"global_load_ushort v{vP0+hd*8+j}, v{vM+1}, s[{P_PHI}:{P_PHI+1}] offset:{off}")
            vm.issue("phi")
    issue_stage(1); issue_stage(2)
    srd(A, R_WS, P_WS, WS_BYTES); srd(A, R_DBG, P_DBG, 256)
    A(f"""
    v_and_b32 v{vM+4}, 31, v{vLANE}
    s_lshl_b32 s{sT0}, s{sRH}, 5
    v_add_u32 v{vM+4}, s{sT0}, v{vM+4}        ; row
    v_bfe_u32 v{vM+5}, v{vM+4}, 1, 3          ; f(row)
    v_xor_b32 v{vM+5}, v{vM+5}, v{vM+2}       ; ^h
    v_lshlrev_b32 v{vM+5}, 4, v{vM+5}
    v_lshl_add_u32 v{vXA}, v{vM+4}, 7, v{vM+5}
    v_xor_b32 v{vXA+1}, 32, v{vXA}
    v_xor_b32 v{vXA+2}, 64, v{vXA}
    v_xor_b32 v{vXA+3}, 96, v{vXA}
    v_bfe_u32 v{vM+4}, v{vLANE}, 2, 2         ; r
    v_lshl_add_u32 v{vM+5}, v{vM+2}, 3, v{vM+4}   ; 8h + r
    v_lshlrev_b32 v{vM+5}, 7, v{vM+5}
    v_lshrrev_b32 v{vM+4}, 1, v{vM+4}
    v_xor_b32 v{vM+4}, s{sHP}, v{vM+4}
    v_lshl_add_u32 v{vM+5}, v{vM+4}, 6, v{vM+5}
    v_bfe_u32 v{vM+4}, v{vLANE}, 4, 1
    v_lshl_add_u32 v{vM+5}, v{vM+4}, 5, v{vM+5}
    v_and_b32 v{vM+4}, 3, v{vLANE}
    v_lshl_add_u32 v{vWA}, v{vM+4}, 3, v{vM+5}
    v_add_u32 v{vWA+1}, 0x8000, v{vWA}
    """)
    def trd(dst, off):
        b = vWA if off < 0x8000 else vWA+1
        o = off if off < 0x8000 else off-0x8000
        A(f"ds_read_b64_tr_b16 {vr(dst,2)}, v{b} offset:{o}")
    def reads(i, ks):
        slot=(i%3)*SLOT
        A(f"ds_read_b128 {vr(vXF+16*i+4*ks,4)}, v{vXA+ks} offset:{slot}")
        for t in range(2):
            for u in range(2):
                trd(vWF+8*ks+4*t+2*u, slot+8192*(t+1)+(16*ks+4*u)*128)
    def mm(i, ks):
        first = (i==0 and ks==0)
        x = vr(vXF+16*i+4*ks,4)
        A(f"v_mfma_f32_32x32x16_bf16 {vr(vAK,16)}, {vr(vWF+8*ks,4)}, {x}, {'0' if first else vr(vAK,16)}")
        A(f"v_mfma_f32_32x32x16_bf16 {vr(vAV,16)}, {x}, {vr(vWF+8*ks+4,4)}, {'0' if first else vr(vAV,16)}")
    for i in range(8):
        vm.wait(A, ("st",i))
        A("s_barrier")
        if i==6:
            A(f"""
            s_and_b32 s{sT0}, s{sHG}, 3
            s_lshl_b32 s{sT0}, s{sT0}, 6
            s_lshr_b32 s{sT1}, s{sHG}, 2
            s_lshl_b32 s{sT1}, s{sT1}, 2
            s_add_u32 s{sT0}, s{sT0}, s{sT1}
            s_add_u32 s{sT0}, s{sT0}, 16
            v_mov_b32 v{vM+10}, s{sT0}
            buffer_load_dword v{vM+11}, v{vM+10}, s[{R_DBG}:{R_DBG+3}], 0 offen sc1
            """); vm.issue("rdy")
        reads(i,0); reads(i,1)
        if i>=1: issue_stage(i+2)
        if i==0:
            vm.wait(A,"phi")
            A(f"v_bfe_u32 v{vM+4}, v{vLANE}, 2, 1\nv_mul_u32_u24 v{vM+4}, 0x8000, v{vM+4}\nv_lshl_or_b32 v{vM+4}, v{vM+4}, 16, v{vM+4}")
            for q in range(8):
                A(f"v_lshl_or_b32 v{vPH+q}, v{vP0+2*q+1}, 16, v{vP0+2*q}")
                A(f"v_xor_b32 v{vPH+q}, v{vM+4}, v{vPH+q}")
        A("s_waitcnt lgkmcnt(5)"); mm(i,0); reads(i,2)
        A("s_waitcnt lgkmcnt(5)"); mm(i,1); reads(i,3)
        A("s_waitcnt lgkmcnt(5)"); mm(i,2)
        A("s_waitcnt lgkmcnt(0)"); mm(i,3)
    A("s_barrier")
    issue_stage(10)
    vL = vM
    vKB = vWF
    vVB = vWF+8
    vS0 = vWF+16
    vS1 = vWF+24
    SCR0, SCR1 = SLOT+16384, 3*SLOT
    A(f"""
    v_mov_b32 v{vL}, {hex(LOG2E)}
    s_mov_b32 s{sLO}, 0x0000ffff
    s_mov_b32 s{sLO+1}, 0x0000ffff
    s_mov_b32 s{sHI}, 0xffff0000
    s_mov_b32 s{sHI+1}, 0xffff0000
    s_mul_i32 s{sT0}, s{sHP}, {SCR1-SCR0}
    s_lshl_b32 s{sT1}, s{sRH}, 12
    s_add_u32 s{sT0}, s{sT0}, s{sT1}
    s_add_u32 s{sT0}, s{sT0}, {SCR0}
    v_and_b32 v{vM+8}, 31, v{vLANE}
    v_lshlrev_b32 v{vM+8}, 6, v{vM+8}
    v_lshrrev_b32 v{vM+9}, 5, v{vLANE}
    v_lshl_add_u32 v{vM+8}, v{vM+9}, 5, v{vM+8}
    v_add_u32 v{vXA}, s{sT0}, v{vM+8}
    v_bfe_u32 v{vM+8}, v{vLANE}, 2, 2
    v_lshl_add_u32 v{vM+8}, v{vM+9}, 2, v{vM+8}    ; 4hh + r
    v_lshlrev_b32 v{vM+8}, 6, v{vM+8}
    v_bfe_u32 v{vM+9}, v{vLANE}, 4, 1
    v_lshl_add_u32 v{vM+8}, v{vM+9}, 5, v{vM+8}
    v_and_b32 v{vM+9}, 3, v{vLANE}
    v_lshl_add_u32 v{vM+8}, v{vM+9}, 3, v{vM+8}
    v_add_u32 v{vXA+1}, s{sT0}, v{vM+8}
    v_lshlrev_b32 v{vM+8}, 2, v{vLANE}
    v_add_u32 v{vXA+2}, s{sT0}, v{vM+8}
    v_xor_b32 v{vXA+3}, 0x1000, v{vXA+2}
    """)
    for q in range(8): A(f"v_cvt_pk_bf16_f32 v{vKB+q}, v{vAK+2*q}, v{vAK+2*q+1}")
    A(f"v_mfma_f32_32x32x16_bf16 {vr(vP0,16)}, {vr(vPH,4)}, {vr(vKB,4)}, 0")
    A(f"v_mfma_f32_32x32x16_bf16 {vr(vP1,16)}, {vr(vPH+4,4)}, {vr(vKB+4,4)}, 0")
    for q in range(8): A(f"v_cvt_pk_bf16_f32 v{vVB+q}, v{vAV+2*q}, v{vAV+2*q+1}")
    A(f"v_mov_b32 v{vM+8}, 0x3f803f80")
    for q in range(8): A(f"v_cndmask_b32 v{vAK+q}, v{vM+8}, v{vVB+q}, s[{sLO}:{sLO+1}]")
    for q in range(8): A(f"v_cndmask_b32 v{vAK+8+q}, v{vM+8}, v{vVB+q}, s[{sHI}:{sHI+1}]")
    softmax16(A, vP0, vS0, vL, vM+2)
    A(f"ds_write_b128 v{vXA}, {vr(vS0,4)}\nds_write_b128 v{vXA}, {vr(vS0+4,4)} offset:16")
    softmax16(A, vP1, vS1, vL, vM+2)
    A(f"ds_write_b128 v{vXA}, {vr(vS1,4)} offset:2048\nds_write_b128 v{vXA}, {vr(vS1+4,4)} offset:{2048+16}")
    for hd in range(2):
        for fr in range(2):
            for u in range(2):
                A(f"ds_read_b64_tr_b16 {vr(vWF+8*hd+4*fr+2*u,2)}, v{vXA+1} offset:{2048*hd+(16*fr+8*u)*64}")
    A("s_waitcnt lgkmcnt(4)")
    A(f"v_mfma_f32_32x32x16_bf16 {vr(vP0,16)}, {vr(vAK,4)}, {vr(vWF,4)}, 0")
    A(f"v_mfma_f32_32x32x16_bf16 {vr(vP0,16)}, {vr(vAK+4,4)}, {vr(vWF+4,4)}, {vr(vP0,16)}")
    A("s_waitcnt lgkmcnt(0)")
    A(f"v_mfma_f32_32x32x16_bf16 {vr(vP1,16)}, {vr(vAK+8,4)}, {vr(vWF+8,4)}, 0")
    A(f"v_mfma_f32_32x32x16_bf16 {vr(vP1,16)}, {vr(vAK+12,4)}, {vr(vWF+12,4)}, {vr(vP1,16)}")
    H0 = [vP0+r for r in range(8)]+[vP0+8]
    H1 = [vP1+8+r for r in range(8)]+[vP1]
    A(f"s_cmp_eq_u32 s{sRH}, 0\ns_cbranch_scc1 G_RH0")
    for q in range(9): A(f"ds_write_b32 v{vXA+2}, v{H0[q]} offset:{256*q}")
    for q in range(9): A(f"v_mov_b32 v{vAV+q}, v{H1[q]}")
    A("s_branch G_RHJ\nG_RH0:\ns_nop 11")
    for q in range(9): A(f"ds_write_b32 v{vXA+2}, v{H1[q]} offset:{256*q}")
    for q in range(9): A(f"v_mov_b32 v{vAV+q}, v{H0[q]}")
    A("G_RHJ:")
    A(f"""
    s_lshl_b32 s{sT0}, s{sHG}, 2
    s_lshl_b32 s{sT1}, s{sHP}, 1
    s_add_u32 s{sT0}, s{sT0}, s{sT1}           ; first head of the pair
    s_add_u32 s{sT1}, s{sT0}, s{sRH}
    s_mul_i32 s{sT1}, s{sT1}, {KVH}
    s_add_u32 s{sT1}, s{sT1}, {KV}
    v_and_b32 v{vM+8}, 31, v{vLANE}
    v_lshlrev_b32 v{vM+8}, 2, v{vM+8}
    v_lshrrev_b32 v{vM+9}, 5, v{vLANE}
    v_lshl_add_u32 v{vM+8}, v{vM+9}, 9, v{vM+8}
    s_waitcnt lgkmcnt(0)
    """)
    vm.waitall(A)
    A("s_barrier")
    for q in range(9): A(f"ds_read_b32 v{vP0+q}, v{vXA+3} offset:{256*q}")
    A(f"""
    s_mov_b32 s{sXO}, 0
    G_RDY:
    v_readfirstlane_b32 s{sC}, v{vM+11}
    s_cmp_lg_u32 s{sC}, 0
    s_cbranch_scc1 G_RDYOK
    s_add_u32 s{sXO}, s{sXO}, 1
    s_cmp_gt_u32 s{sXO}, {SPIN_MAX}
    s_cbranch_scc1 G_RDYOK
    s_sleep 4
    buffer_load_dword v{vM+11}, v{vM+10}, s[{R_DBG}:{R_DBG+3}], 0 offen sc1
    s_waitcnt vmcnt(0)
    s_branch G_RDY
    G_RDYOK:
    s_waitcnt lgkmcnt(0)
    """)
    for q in range(9): A(f"v_add_f32 v{vAV+q}, v{vAV+q}, v{vP0+q}")
    for q in range(8):
        A(f"buffer_atomic_add_f32 v{vAV+q}, v{vM+8}, s[{R_WS}:{R_WS+3}], s{sT1} offen offset:{(8*(q>>2)+(q&3))*128}")
    A(f"s_mov_b32 exec_hi, 0")
    A(f"buffer_atomic_add_f32 v{vAV+8}, v{vM+8}, s[{R_WS}:{R_WS+3}], s{sT1} offen offset:2048")
    A(f"s_mov_b64 exec, -1")
    def qoff(ci):
        st = 8+ci//3
        return (st%3)*SLOT + 8192*(ci%3)
    def qreads(n):
        ci, ks = n//4, n%4
        for u in range(2): trd(vWF+4*(n%8)+2*u, qoff(ci)+(16*ks+4*u)*128)
    for n in range(6): qreads(n)
    for n in range(32):
        rem = min(31-n, 5)
        A(f"s_waitcnt lgkmcnt({2*rem})")
        A(f"v_mfma_f32_32x32x16_bf16 {vr(vAK,16)}, {vr(vWF+4*(n%8),4)}, {vr(vXF+4*n,4)}, {'0' if n==0 else vr(vAK,16)}")
        if n+6<32: qreads(n+6)
    A(f"""
    s_lshl_b32 s{sT1}, s{sRB}, 1
    s_add_u32 s{sT1}, s{sT1}, s{sRH}
    s_lshl_b32 s{sT1}, s{sT1}, 5
    s_add_u32 s{sT1}, s{sT1}, s{sT0}           ; *32 + head
    s_lshl_b32 s{sT1}, s{sT1}, 11
    s_add_u32 s{sT1}, s{sT1}, {PHIQ}
    v_lshlrev_b32 v{vM+8}, 4, v{vLANE}
    """)
    for q in range(8): A(f"v_cvt_pk_bf16_f32 v{vKB+q}, v{vAK+2*q}, v{vAK+2*q+1}")
    A(f"v_mfma_f32_32x32x16_bf16 {vr(vP0,16)}, {vr(vPH,4)}, {vr(vKB,4)}, 0")
    A(f"v_mfma_f32_32x32x16_bf16 {vr(vP1,16)}, {vr(vPH+4,4)}, {vr(vKB+4,4)}, 0")
    softmax16(A, vP0, vS0, vL, vM+2)
    A(f"buffer_store_dwordx4 {vr(vS0,4)}, v{vM+8}, s[{R_WS}:{R_WS+3}], s{sT1} offen")
    A(f"buffer_store_dwordx4 {vr(vS0+4,4)}, v{vM+8}, s[{R_WS}:{R_WS+3}], s{sT1} offen offset:1024")
    softmax16(A, vP1, vS1, vL, vM+2)
    A(f"buffer_store_dwordx4 {vr(vS1,4)}, v{vM+8}, s[{R_WS}:{R_WS+3}], s{sT1} offen offset:2048")
    A(f"buffer_store_dwordx4 {vr(vS1+4,4)}, v{vM+8}, s[{R_WS}:{R_WS+3}], s{sT1} offen offset:3072")
    A("s_endpgm")

def cmul(A, d, a, b, t):
    A(f"v_pk_mul_f32 {vr(t,2)}, {vr(a,2)}, {vr(b,2)} op_sel_hi:[0,1]")
    A(f"v_pk_fma_f32 {vr(d,2)}, {vr(a,2)}, {vr(b,2)}, {vr(t,2)} op_sel:[1,1,0] op_sel_hi:[1,0,1] neg_lo:[1,0,0]")

def conv_role(A):
    vm = VM()
    sCID,sXCD,sJ,sW,sT0,sT1,sCH,sHALF,sLD,sDS,sT2,sCHL = 3,4,5,6,7,8,9,10,11,12,13,14
    sEX = 70
    TABW = 6*2112
    TAB = 0
    KT = 4*TABW
    KTA = 4160; KTC = 2*KTA
    XS = KT + 2*KTC
    XSC = 4608
    LDS_END = XS + 2*XSC
    assert LDS_END <= 81920, LDS_END
    XB = KT
    vLANE = 1
    vT = 2
    A(f"""
    s_sub_u32 s{sCID}, s2, 256
    s_and_b32 s{sXCD}, s{sCID}, 7
    s_lshr_b32 s{sJ}, s{sCID}, 3
    v_lshrrev_b32 v{vT}, 6, v0
    v_and_b32 v{vLANE}, 63, v0
    v_readfirstlane_b32 s{sW}, v{vT}
    s_lshl_b32 s{sCH}, s{sXCD}, 6
    s_lshl_b32 s{sT0}, s{sJ}, 1
    s_add_u32 s{sCH}, s{sCH}, s{sT0}          ; c0
    s_lshr_b32 s{sCHL}, s{sW}, 1
    s_and_b32 s{sHALF}, s{sW}, 1
    s_lshl_b32 s{sT0}, s{sCH}, 1
    s_add_u32 s{sCH}, s{sCH}, s{sCHL}
    s_lshl_b32 s{sT1}, s{sCH}, 8
    s_lshl_b32 s{sT2}, s{sHALF}, 7
    s_add_u32 s{sT1}, s{sT1}, s{sT2}
    v_lshlrev_b32 v{vT}, 1, v{vLANE}
    v_add_u32 v{vT}, s{sT1}, v{vT}
    s_waitcnt lgkmcnt(0)
    s_load_dword s{sLD}, s[{P_LDT}:{P_LDT+1}], s{sT0}
    s_load_dword s{sDS}, s[{P_DSK}:{P_DSK+1}], s{sT0}
    """)
    srd(A, R_X, P_X, 2<<20); srd(A, R_WS, P_WS, WS_BYTES); srd(A, R_DBG, P_DBG, 256)
    vPR = 20
    A(f"s_and_b32 s{sT0}, s{sJ}, 1\ns_cmp_eq_u32 s{sT0}, 0\ns_cbranch_scc0 C_ODD")
    A(f"""
    v_lshrrev_b32 v{vT+1}, 3, v{vLANE}        ; r8
    v_and_b32 v{vT+2}, 7, v{vLANE}
    v_lshrrev_b32 v{vT+3}, 1, v{vT+1}
    v_xor_b32 v{vT+2}, v{vT+2}, v{vT+3}
    v_lshlrev_b32 v{vT+2}, 4, v{vT+2}
    v_lshl_add_u32 v{vT+2}, v{vT+1}, 10, v{vT+2}
    s_lshl_b32 s{sT0}, s{sJ}, 16
    s_lshl_b32 s{sT1}, s{sW}, 15
    s_add_u32 s{sT0}, s{sT0}, s{sT1}
    s_lshl_b32 s{sT1}, s{sXCD}, 7
    s_add_u32 s{sT0}, s{sT0}, s{sT1}
    v_add_u32 v{vT+2}, s{sT0}, v{vT+2}
    v_xor_b32 v{vT+3}, 64, v{vT+2}
    s_lshl_b32 s{sT1}, s{sW}, 12
    s_add_u32 m0, s{sT1}, {XB}
    s_mov_b32 s{sT0}, {8192-1024}
    s_mov_b32 s{sT1}, {16384-2048}
    s_mov_b32 s{sT2}, {24576-3072}
    buffer_load_dwordx4 v{vT+2}, s[{R_X}:{R_X+3}], 0 offen lds
    buffer_load_dwordx4 v{vT+3}, s[{R_X}:{R_X+3}], s{sT0} offen offset:1024 lds
    buffer_load_dwordx4 v{vT+2}, s[{R_X}:{R_X+3}], s{sT1} offen offset:2048 lds
    buffer_load_dwordx4 v{vT+3}, s[{R_X}:{R_X+3}], s{sT2} offen offset:3072 lds
    """)
    for i,p in enumerate((P_ARE,P_AIM,P_BRE,P_BIM,P_CRE,P_CIM)):
        A(f"global_load_ushort v{vPR+i}, v{vT}, s[{p}:{p+1}]")
    A(f"""
    v_lshrrev_b32 v{vT+1}, 4, v{vLANE}        ; g
    v_bfe_u32 v{vT+2}, v{vLANE}, 2, 2         ; r
    v_lshl_add_u32 v{vT+3}, v{vT+1}, 3, v{vT+2}   ; row = 8g + r (u=0)
    v_bfe_u32 v{vT+4}, v{vLANE}, 1, 1         ; c'>>1
    s_lshl_b32 s{sT0}, s{sW}, 1
    v_add_u32 v{vT+4}, s{sT0}, v{vT+4}        ; chunk = 2w + (c'>>1)
    v_bfe_u32 v{vT+5}, v{vT+3}, 1, 3          ; f(row)
    v_xor_b32 v{vT+5}, v{vT+5}, v{vT+4}
    v_lshlrev_b32 v{vT+5}, 4, v{vT+5}
    v_lshl_add_u32 v{vT+5}, v{vT+3}, 7, v{vT+5}
    v_and_b32 v{vT+6}, 1, v{vLANE}
    v_lshl_add_u32 v{vT+5}, v{vT+6}, 3, v{vT+5}   ; u=0 addr
    v_xor_b32 v{vT+6}, 32, v{vT+5}                ; u=1: row+4 -> f ^= 2
    v_and_b32 v{vT+7}, 15, v{vLANE}
    s_lshl_b32 s{sT0}, s{sXCD}, 6
    s_lshl_b32 s{sT1}, s{sW}, 4
    s_add_u32 s{sT0}, s{sT0}, s{sT1}
    v_add_u32 v{vT+7}, s{sT0}, v{vT+7}            ; channel
    v_lshlrev_b32 v{vT+7}, 12, v{vT+7}
    v_lshl_add_u32 v{vT+7}, v{vT+1}, 4, v{vT+7}
    s_lshl_b32 s{sT0}, s{sJ}, 7
    s_add_u32 s{sT0}, s{sT0}, {XT}
    s_waitcnt vmcnt(6)
    s_barrier
    """)
    for n in range(4):
        A(f"ds_read_b64_tr_b16 {vr(28+4*n,2)}, v{vT+5} offset:{XB+4096*n}")
        A(f"ds_read_b64_tr_b16 {vr(30+4*n,2)}, v{vT+6} offset:{XB+4096*n+512}")
    for n in range(4):
        A(f"s_waitcnt lgkmcnt({6-2*n})")
        A(f"buffer_store_dwordx4 {vr(28+4*n,4)}, v{vT+7}, s[{R_WS}:{R_WS+3}], s{sT0} offen offset:{64*n} sc1")
    A("s_branch C_JOIN")
    A("C_ODD:")
    for i,p in enumerate((P_ARE,P_AIM,P_BRE,P_BIM,P_CRE,P_CIM)):
        A(f"global_load_ushort v{vPR+i}, v{vT}, s[{p}:{p+1}]")
    A(f"""
    s_lshl_b32 s{sT0}, s{sXCD}, 4
    s_lshr_b32 s{sT1}, s{sJ}, 1
    s_add_u32 s{sT0}, s{sT0}, s{sT1}          ; o
    s_lshl_b32 s{sT1}, s{sT0}, 2
    s_add_u32 s{sT1}, s{sT1}, s{sW}           ; id
    s_lshr_b32 s{sT2}, s{sT1}, 5
    s_lshl_b32 s{sT2}, s{sT2}, 6
    s_and_b32 s15, s{sT1}, 31
    s_lshl_b32 s15, s15, 14
    s_add_u32 s{sT2}, s{sT2}, s15
    v_and_b32 v{vT+1}, 31, v{vLANE}
    v_lshlrev_b32 v{vT+1}, 1, v{vT+1}
    v_lshrrev_b32 v{vT+2}, 5, v{vLANE}
    v_lshl_add_u32 v{vT+1}, v{vT+2}, 12, v{vT+1}
    v_add_u32 v{vT+1}, s{sT2}, v{vT+1}
    v_add_u32 v{vT+3}, 8192, v{vT+1}
    """)
    for j in range(8):
        A(f"global_load_ushort v{28+j}, v{vT+1 if j<4 else vT+3}, s[{P_WO}:{P_WO+1}] offset:{1024*(j&3)}")
    A(f"""
    s_lshl_b32 s{sT2}, s{sT0}, 4
    s_lshl_b32 s15, s{sW}, 2
    s_add_u32 s{sT2}, s{sT2}, s15             ; row0
    v_and_b32 v{vT+4}, 31, v{vLANE}
    v_lshlrev_b32 v{vT+4}, 5, v{vT+4}
    v_lshl_add_u32 v{vT+5}, v{vT+2}, 10, v{vT+4}
    s_lshl_b32 s15, s{sT2}, 10
    global_load_dwordx4 v[36:39], v{vT+4}, s[{P_GW}:{P_GW+1}]
    global_load_dwordx4 v[40:43], v{vT+4}, s[{P_GW}:{P_GW+1}] offset:16
    buffer_load_dwordx4 v[44:47], v{vT+5}, s[{R_X}:{R_X+3}], s15 offen
    buffer_load_dwordx4 v[48:51], v{vT+5}, s[{R_X}:{R_X+3}], s15 offen offset:16
    buffer_load_dwordx4 v[52:55], v{vT+5}, s[{R_X}:{R_X+3}], s15 offen offset:2048
    buffer_load_dwordx4 v[56:59], v{vT+5}, s[{R_X}:{R_X+3}], s15 offen offset:2064
    s_cmp_eq_u32 s{sJ}, 1
    s_cbranch_scc0 C_NOZ
    v_mov_b32 v60, 0
    v_mov_b32 v61, 0
    v_mov_b32 v62, 0
    v_mov_b32 v63, 0
    v_lshlrev_b32 v{vT+6}, 4, v0
    s_mul_i32 s15, s{sXCD}, {4*KVH}
    s_add_u32 s15, s15, {KV}
    buffer_store_dwordx4 v[60:63], v{vT+6}, s[{R_WS}:{R_WS+3}], s15 offen sc1
    s_add_u32 s15, s15, 4096
    buffer_store_dwordx4 v[60:63], v{vT+6}, s[{R_WS}:{R_WS+3}], s15 offen sc1
    s_add_u32 s15, s15, 4096
    v_cmp_gt_u32 vcc, 32, v0
    s_and_saveexec_b64 s[{sEX}:{sEX+1}], vcc
    s_cbranch_execz C_Z1
    buffer_store_dwordx4 v[60:63], v{vT+6}, s[{R_WS}:{R_WS+3}], s15 offen sc1
    C_Z1:
    s_mov_b64 exec, s[{sEX}:{sEX+1}]
    C_NOZ:
    s_waitcnt vmcnt(0)
    """)
    for q in range(4): A(f"v_lshl_or_b32 v{60+q}, v{29+2*q}, 16, v{28+2*q}")
    A(f"""
    s_lshl_b32 s{sT1}, s{sT1}, 10
    s_add_u32 s{sT1}, s{sT1}, {WOP}
    v_lshlrev_b32 v{vT+6}, 4, v{vLANE}
    buffer_store_dwordx4 v[60:63], v{vT+6}, s[{R_WS}:{R_WS+3}], s{sT1} offen
    v_mov_b32 v28, 0
    v_mov_b32 v29, 0
    """)
    for q in range(8):
        A(f"v_dot2_f32_bf16 v28, v{44+q}, v{36+q}, v28")
        A(f"v_dot2_f32_bf16 v29, v{52+q}, v{36+q}, v29")
    for sh in (1,2,4,8):
        A(f"v_add_f32_dpp v28, v28, v28 row_ror:{sh} row_mask:0xf bank_mask:0xf")
        A(f"v_add_f32_dpp v29, v29, v29 row_ror:{sh} row_mask:0xf bank_mask:0xf")
    A(f"""
    v_mov_b32 v30, v28
    v_mov_b32 v31, v29
    v_permlane16_swap_b32 v28, v30
    v_permlane16_swap_b32 v29, v31
    v_add_f32 v28, v28, v30
    v_add_f32 v29, v29, v31
    v_mul_f32 v28, {hex(f2u(-math.log2(math.e)))}, v28
    v_mul_f32 v29, {hex(f2u(-math.log2(math.e)))}, v29
    v_exp_f32 v28, v28
    v_exp_f32 v29, v29
    v_add_f32 v28, 1.0, v28
    v_add_f32 v29, 1.0, v29
    v_rcp_f32 v28, v28
    v_rcp_f32 v29, v29
    v_lshlrev_b32 v{vT+6}, 2, v{vT+2}
    s_lshl_b32 s{sT2}, s{sT2}, 2
    s_add_u32 s{sT2}, s{sT2}, {GOFF}
    s_mov_b32 exec_lo, 1
    s_mov_b32 exec_hi, 1
    buffer_store_dword v28, v{vT+6}, s[{R_WS}:{R_WS+3}], s{sT2} offen
    buffer_store_dword v29, v{vT+6}, s[{R_WS}:{R_WS+3}], s{sT2} offen offset:8
    s_mov_b64 exec, -1
    s_barrier
    s_cmp_eq_u32 s{sJ}, 1
    s_cbranch_scc0 C_JOIN
    s_cmp_eq_u32 s{sW}, 0
    s_cbranch_scc0 C_JOIN
    s_and_b32 s{sT0}, s{sXCD}, 3
    s_lshl_b32 s{sT0}, s{sT0}, 6
    s_lshr_b32 s{sT1}, s{sXCD}, 2
    s_lshl_b32 s{sT1}, s{sT1}, 2
    s_add_u32 s{sT0}, s{sT0}, s{sT1}
    s_add_u32 s{sT0}, s{sT0}, 16
    v_mov_b32 v28, 1
    v_mov_b32 v29, s{sT0}
    s_mov_b64 exec, 1
    buffer_store_dword v28, v29, s[{R_DBG}:{R_DBG+3}], 0 offen sc1
    s_mov_b64 exec, -1
    C_JOIN:
    """)
    vA = 28
    vCB = 30; vE1=32; vE4=34; vE16=36; vE64=38; vS256=40; vS512=42; vS2048=44; vU=46; vU2=48
    A(f"""
    s_waitcnt vmcnt(4) lgkmcnt(0)
    s_lshl_b32 s{sT0}, s{sCHL}, 4
    s_lshr_b32 s{sLD}, s{sLD}, s{sT0}
    s_lshl_b32 s{sLD}, s{sLD}, 16
    s_lshr_b32 s{sDS}, s{sDS}, s{sT0}
    s_lshl_b32 s{sDS}, s{sDS}, 16
    v_mov_b32 v{vT}, {hex(LOG2E)}
    v_mul_f32 v{vT+1}, s{sLD}, v{vT}
    v_exp_f32 v{vT+1}, v{vT+1}
    """)
    for i in range(6): A(f"v_lshlrev_b32 v{vPR+i}, 16, v{vPR+i}")
    A(f"""
    v_cvt_pk_bf16_f32 v{vT+1}, v{vT+1}, v{vT+1}
    v_and_b32 v{vT+2}, 0xffff0000, v{vT+1}    ; dt
    v_pk_mul_f32 {vr(vPR,2)}, {vr(vPR,2)}, {vr(vT+2,2)} op_sel_hi:[1,0]
    v_pk_mul_f32 {vr(vPR+2,2)}, {vr(vPR+2,2)}, {vr(vT+2,2)} op_sel_hi:[1,0]
    v_mul_f32 v{vA}, v{vT}, v{vPR}
    v_mul_f32 v{vA+1}, 0.15915494309189532, v{vPR+1}
    """)
    cmul(A, vCB, vPR+4, vPR+2, vCB)
    def cexp(d, p):
        A(f"""
        v_mul_f32 v{vT+4}, {hex(f2u(float(p)))}, v{vA}
        v_mul_f32 v{vT+5}, {hex(f2u(float(p)))}, v{vA+1}
        v_exp_f32 v{vT+4}, v{vT+4}
        v_fract_f32 v{vT+5}, v{vT+5}
        v_cos_f32 v{d}, v{vT+5}
        v_sin_f32 v{d+1}, v{vT+5}
        v_pk_mul_f32 {vr(d,2)}, {vr(d,2)}, {vr(vT+4,2)} op_sel_hi:[1,0]
        """)
    cexp(vE1,1); cexp(vE16,16); cexp(vS512,512)
    def pow4(d, a):
        cmul(A, vU, a, a, vU); cmul(A, d, vU, vU, d)
    pow4(vE4, vE1); pow4(vE64, vE16); pow4(vS2048, vS512); pow4(vU2, vE64)
    cmul(A, vS256, vU2, vCB, vS256)
    cmul(A, vU, vS512, vCB, vU);  A(f"v_mov_b32 v{vS512}, v{vU}\nv_mov_b32 v{vS512+1}, v{vU+1}")
    cmul(A, vU, vS2048, vCB, vU); A(f"v_mov_b32 v{vS2048}, v{vU}\nv_mov_b32 v{vS2048+1}, v{vU+1}")
    vTW, vTR = 50, 51
    A(f"""
    s_mul_i32 s{sT0}, s{sW}, {TABW}
    v_lshlrev_b32 v{vTW}, 4, v{vLANE}
    v_add_u32 v{vTW}, s{sT0}, v{vTW}
    v_lshrrev_b32 v{vT+4}, 4, v{vLANE}        ; g
    v_bfe_u32 v{vT+5}, v{vLANE}, 2, 2         ; r
    v_lshl_add_u32 v{vT+4}, v{vT+4}, 3, v{vT+5}
    v_lshlrev_b32 v{vT+4}, 4, v{vT+4}
    v_bfe_u32 v{vT+5}, v{vLANE}, 1, 1
    v_mul_u32_u24 v{vT+5}, 1088, v{vT+5}
    v_add_u32 v{vT+4}, v{vT+4}, v{vT+5}
    v_and_b32 v{vT+5}, 1, v{vLANE}
    v_lshl_add_u32 v{vT+4}, v{vT+5}, 3, v{vT+4}
    v_add_u32 v{vTR}, s{sT0}, v{vT+4}
    """)
    vCHN = 52
    vAC = 88
    vFR = 104
    def gen_round(chains):
        st = []
        for ci,(slot,start,step,neg,first) in enumerate(chains):
            b = vCHN+12*ci
            st.append(dict(b=b, slot=slot, step=step, neg=neg, first=first, start=start))
        for i in range(16):
            for c in st:
                if i < c["first"]: continue
                cur = c["b"]+2*(i&1); prv = c["b"]+2*((i+1)&1)
                if i == c["first"]:
                    if c["start"] is None: A(f"v_mov_b32 v{cur}, 1.0\nv_mov_b32 v{cur+1}, 0")
                    else: A(f"v_mov_b32 v{cur}, v{c['start']}\nv_mov_b32 v{cur+1}, v{c['start']+1}")
                else:
                    cmul(A, cur, prv, c["step"], cur)
            if i&1:
                for c in st:
                    if i < c["first"]: continue
                    e, o = c["b"], c["b"]+2
                    q = (i>>1)&3
                    n = "-" if c["neg"] else ""
                    A(f"v_cvt_pk_bf16_f32 v{c['b']+4+q}, v{e}, v{o}")
                    A(f"v_cvt_pk_bf16_f32 v{c['b']+8+q}, {n}v{e+1}, {n}v{o+1}")
            if (i&7)==7:
                for c in st:
                    if i < c["first"]: continue
                    h = i>>3
                    A(f"ds_write_b128 v{vTW}, {vr(c['b']+4,4)} offset:{(2*c['slot'])*2112+1088*h}")
                    A(f"ds_write_b128 v{vTW}, {vr(c['b']+8,4)} offset:{(2*c['slot']+1)*2112+1088*h}")
    def mm_round(t0):
        for ks in range(2):
            for part in range(2):
                for slot in range(3):
                    for u in range(2):
                        d = vFR + ((ks*2+part)*3+slot)*4+2*u
                        A(f"ds_read_b64_tr_b16 {vr(d,2)}, v{vTR} offset:{(2*slot+part)*2112+(32*ks+4*u)*16}")
                if ks*2+part>=1:
                    k2 = ks*2+part-1
                    A("s_waitcnt lgkmcnt(6)")
                    for t in range(2):
                        A(f"v_mfma_f32_16x16x32_bf16 {vr(vAC+4*(t0+t),4)}, {vr(vFR+k2*12,4)}, {vr(vFR+k2*12+4+4*t,4)}, {'0' if k2==0 else vr(vAC+4*(t0+t),4)}")
        A("s_waitcnt lgkmcnt(0)")
        for t in range(2):
            A(f"v_mfma_f32_16x16x32_bf16 {vr(vAC+4*(t0+t),4)}, {vr(vFR+36,4)}, {vr(vFR+36+4+4*t,4)}, {vr(vAC+4*(t0+t),4)}")
    gen_round([(0,None,vE1,False,0),(1,vCB,vE16,True,0),(2,vS256,vE16,True,0)])
    A(f"""
    s_waitcnt vmcnt(0)
    s_barrier
    s_and_b32 s{sT0}, s{sXCD}, 3
    s_lshl_b32 s{sT0}, s{sT0}, 6
    s_lshr_b32 s{sT1}, s{sXCD}, 2
    s_lshl_b32 s{sT1}, s{sT1}, 2
    s_add_u32 s{sT0}, s{sT0}, s{sT1}
    v_mov_b32 v{vT+8}, s{sT0}
    s_and_b32 s{sT1}, s{sJ}, 1
    s_or_b32 s{sT1}, s{sT1}, s{sW}
    s_cmp_eq_u32 s{sT1}, 0
    s_cbranch_scc0 C_NOPUB
    v_mov_b32 v{vT+9}, 1
    s_mov_b64 exec, 1
    buffer_atomic_add v{vT+9}, v{vT+8}, s[{R_DBG}:{R_DBG+3}], 0 offen sc1
    s_mov_b64 exec, -1
    C_NOPUB:
    """)
    mm_round(0)
    A(f"""
    v_cvt_pk_bf16_f32 v{vCHN+16}, v{vS2048}, v{vS2048}
    v_cvt_pk_bf16_f32 v{vCHN+20}, -v{vS2048+1}, -v{vS2048+1}
    v_mov_b32 v{vCHN+17}, 0
    v_mov_b32 v{vCHN+18}, 0
    v_mov_b32 v{vCHN+19}, 0
    v_mov_b32 v{vCHN+21}, 0
    v_mov_b32 v{vCHN+22}, 0
    v_mov_b32 v{vCHN+23}, 0
    ds_write_b128 v{vTW}, {vr(vCHN+16,4)} offset:{2*2112}
    ds_write_b128 v{vTW}, {vr(vCHN+20,4)} offset:{3*2112}
    """)
    cmul(A, vU, vU2, vU2, vU)
    cmul(A, vS256, vS512, vU, vS256)
    gen_round([(0,None,vE4,False,0),(1,vS512,vE64,True,8),(2,vS256,vE64,True,0)])
    vXR = 152
    A(f"""
    s_cmp_eq_u32 s{sHALF}, 0
    s_cbranch_scc1 C_NOPOLL
    s_mov_b32 s{sT1}, 0
    C_POLL:
    buffer_load_dword v{vT+9}, v{vT+8}, s[{R_DBG}:{R_DBG+3}], 0 offen sc1
    s_waitcnt vmcnt(0)
    v_readfirstlane_b32 s{sT0}, v{vT+9}
    s_cmp_ge_u32 s{sT0}, 16
    s_cbranch_scc1 C_POLLOK
    s_add_u32 s{sT1}, s{sT1}, 1
    s_cmp_gt_u32 s{sT1}, {SPIN_MAX}
    s_cbranch_scc1 C_POLLOK
    s_sleep 4
    s_branch C_POLL
    C_POLLOK:
    s_lshl_b32 s{sT0}, s{sCH}, 12
    s_add_u32 s{sT0}, s{sT0}, {XT}
    v_lshlrev_b32 v{vT+9}, 4, v{vLANE}
    """)
    for q in range(4):
        A(f"buffer_load_dwordx4 {vr(vXR+4*q,4)}, v{vT+9}, s[{R_WS}:{R_WS+3}], s{sT0} offen offset:{1024*q} sc1")
    A("C_NOPOLL:")
    mm_round(2)
    A(f"""
    s_cmp_eq_u32 s{sHALF}, 0
    s_cbranch_scc1 C_EV1
    s_nop 7
    """)
    for t in range(4): A(f"ds_write_b128 v{vTW}, {vr(vAC+4*t,4)} offset:{1024*t}")
    A(f"""
    s_mul_i32 s{sT0}, s{sCHL}, {XSC}
    s_add_u32 s{sT0}, s{sT0}, {XS}
    v_add_u32 v{vT+9}, s{sT0}, v{vT+9}
    v_lshlrev_b32 v{vT+10}, 3, v{vLANE}
    v_add_u32 v{vT+10}, s{sT0}, v{vT+10}
    v_mov_b32 v{vT+12}, 0
    v_mov_b32 v{vT+13}, 0
    ds_write_b64 v{vT+10}, {vr(vT+12,2)}
    s_waitcnt vmcnt(0)
    """)
    for q in range(4): A(f"ds_write_b128 v{vT+9}, {vr(vXR+4*q,4)} offset:{512+1024*q}")
    A(f"""
    s_waitcnt lgkmcnt(0)
    C_EV1:
    s_barrier
    s_cmp_eq_u32 s{sHALF}, 0
    s_cbranch_scc0 C_EXPD
    """)
    for t in range(4): A(f"ds_read_b128 {vr(vFR+4*t,4)}, v{vTW} offset:{TABW+1024*t}")
    vEA, vOA = vT+4, vT+5
    A(f"""
    s_mul_i32 s{sT0}, s{sCHL}, {KTC}
    s_add_u32 s{sT0}, s{sT0}, {KT}
    v_and_b32 v{vT+6}, 15, v{vLANE}           ; a
    v_lshrrev_b32 v{vT+7}, 4, v{vLANE}        ; g
    v_lshl_add_u32 v{vT+6}, v{vT+6}, 2, v{vT+7}   ; 4a+g
    v_sub_u32 v{vT+6}, 63, v{vT+6}
    v_lshlrev_b32 v{vT+10}, 3, v{vT+6}
    v_lshlrev_b32 v{vT+11}, 5, v{vT+6}
    v_add_u32 v{vT+10}, s{sT0}, v{vT+10}
    v_add_u32 v{vT+11}, s{sT0}, v{vT+11}
    v_mov_b32 v{vT+12}, 0
    v_mov_b32 v{vT+13}, 0
    v_mov_b32 v{vT+14}, 0
    v_mov_b32 v{vT+15}, 0
    v_mov_b32 v{vT+16}, s{sT0}
    v_mov_b32 v{vT+17}, 0
    s_mov_b64 exec, 1
    v_mov_b32 v{vT+17}, s{sDS}
    ds_write_b128 v{vT+16}, {vr(vT+12,4)} offset:{4096}
    ds_write_b128 v{vT+16}, {vr(vT+12,4)} offset:{4096+16}
    ds_write_b128 v{vT+16}, {vr(vT+12,4)} offset:{KTA+4096}
    ds_write_b128 v{vT+16}, {vr(vT+12,4)} offset:{KTA+4096+16}
    ds_write_b32 v{vT+16}, v{vT+12} offset:{4092}
    s_mov_b64 exec, -1
    s_waitcnt lgkmcnt(5)
    """)
    for i in range(16): A(f"v_add_f32 v{vAC+i}, v{vAC+i}, v{vFR+i}")
    A(f"v_add_f32 v{vAC}, v{vAC}, v{vT+17}")
    EV, OD = 0, KTA
    def byte_of(arr, l):
        top = 2047 if arr==OD else 2046
        if (top - l) % 2 == 0: return arr + (top-l)//2*4
        return arr + (top-(l+1))//2*4 + 2
    c = vFR+16
    def emit_run(arr, vaddr, lref, vals):
        lo = vals[0][0]; hi = vals[-1][0]; regof = dict(vals)
        top = 2047 if arr==OD else 2046
        l = hi; k=0; pend=[]
        cache={}
        while l >= lo:
            la = lref + l
            if (top-la)%2==0 and l-1>=lo:
                key=(regof[l],regof[l-1])
                if key not in cache:
                    cache[key]=c+len(cache); A(f"v_cvt_pk_bf16_f32 v{cache[key]}, v{key[0]}, v{key[1]}")
                pend.append(("d", byte_of(arr,la), cache[key])); l-=2
            else:
                key=(regof[l],regof[l])
                if key not in cache:
                    cache[key]=c+len(cache); A(f"v_cvt_pk_bf16_f32 v{cache[key]}, v{key[0]}, v{key[1]}")
                pend.append(("h", byte_of(arr,la), cache[key])); l-=1
        for kind,off,reg in pend:
            assert off>=0
            if kind=="d": A(f"ds_write_b32 v{vaddr}, v{reg} offset:{off}")
            else: A(f"ds_write_b16 v{vaddr}, v{reg} offset:{off}")
    T0,T1,T2,T3 = vAC,vAC+4,vAC+8,vAC+12
    r3 = [(d, T3 if d<=4 else T3+2) for d in range(-4,12)]
    r2 = [(d, T2 if d<=2 else T2+1 if d<=5 else T2+2 if d<=10 else T2+3) for d in range(-2,14)]
    r1 = [(d, T1 if d<=1 else T1+2) for d in range(-1,3)]
    r0 = [(d, T0+d) for d in range(4)]
    for arr in (EV,OD): emit_run(arr, vT+11, 1024+63*16, r3)
    A("s_mov_b32 exec_lo, 0xff00ff00\ns_mov_b32 exec_hi, 0xff00ff00")
    for arr in (EV,OD): emit_run(arr, vT+11, 63*16, r2)
    A("s_mov_b64 exec, 1")
    for arr in (EV,OD): emit_run(arr, vT+16, 2044, [(d,T2) for d in range(4 if arr==OD else 3)])
    A("s_mov_b64 exec, -1")
    for arr in (EV,OD): emit_run(arr, vT+10, 256+63*4, r1)
    for arr in (EV,OD): emit_run(arr, vT+10, 63*4, r0)
    A("s_waitcnt lgkmcnt(0)\nC_EXPD:\ns_barrier")
    vKA = 20
    vXA = 24
    vY = 28
    vAF = 64
    vBF = 128
    A(f"""
    v_and_b32 v{vT}, 15, v{vLANE}             ; m / n
    v_lshrrev_b32 v{vT+1}, 4, v{vLANE}        ; g
    v_and_b32 v{vT+2}, 1, v{vT}
    v_mul_u32_u24 v{vT+2}, {KTA}, v{vT+2}
    v_lshrrev_b32 v{vT+3}, 1, v{vT}
    v_lshlrev_b32 v{vT+4}, 2, v{vT+1}
    v_sub_u32 v{vT+3}, v{vT+4}, v{vT+3}
    v_lshl_add_u32 v{vT+2}, v{vT+3}, 2, v{vT+2}
    s_mul_i32 s{sT0}, s{sCHL}, {KTC}
    s_lshl_b32 s{sT1}, s{sHALF}, 8
    s_sub_u32 s{sT0}, s{sT0}, s{sT1}
    s_add_u32 s{sT0}, s{sT0}, {KT+4*(1015-128-48)}
    v_add_u32 v{vKA}, s{sT0}, v{vT+2}
    v_subrev_u32 v{vKA+1}, 1024, v{vKA}
    v_subrev_u32 v{vKA+2}, 2048, v{vKA}
    v_subrev_u32 v{vKA+3}, 3072, v{vKA}
    v_lshlrev_b32 v{vT+2}, 5, v{vT}
    v_lshl_add_u32 v{vT+2}, v{vT+1}, 4, v{vT+2}
    s_mul_i32 s{sT0}, s{sCHL}, {XSC}
    s_sub_u32 s{sT0}, s{sT0}, s{sT1}
    s_add_u32 s{sT0}, s{sT0}, {XS+512-32-192}
    v_add_u32 v{vXA}, s{sT0}, v{vT+2}
    """)
    def cload(it):
        s_ = it&1; L=[]
        for q in range(8):
            o = (128 if q%2==0 else 0) + 48 - 16*it
            L.append(f"ds_read_b128 {vr(vBF+32*s_+4*q,4)}, v{vXA} offset:{512*q+192-64*it}")
            L.append(f"ds_read2_b32 {vr(vAF+32*s_+4*q,2)}, v{vKA+(q>>1)} offset0:{o} offset1:{o+1}")
            L.append(f"ds_read2_b32 {vr(vAF+32*s_+4*q+2,2)}, v{vKA+(q>>1)} offset0:{o+2} offset1:{o+3}")
        return L
    L = cload(0)
    for x in L[:15]: A(x)
    A("s_waitcnt lgkmcnt(6)")
    for x in L[15:]: A(x)
    for it in range(4):
        s_ = it&1
        nxt = cload(it+1) if it<3 else []
        A("s_waitcnt lgkmcnt(0)")
        k=0
        for q in range(8):
            for i in range(q,8):
                first = (it==0 and q==0)
                A(f"v_mfma_f32_16x16x32_bf16 {vr(vY+4*i,4)}, {vr(vAF+32*s_+4*q,4)}, {vr(vBF+32*s_+4*(i-q),4)}, {'0' if first else vr(vY+4*i,4)}")
                if k < len(nxt):
                    if k==14: A("s_waitcnt lgkmcnt(5)")
                    A(nxt[k])
                k+=1
    A(f"""
    s_mul_i32 s{sT0}, s{sW}, {TABW}
    v_lshlrev_b32 v{vT+2}, 4, v{vLANE}
    v_add_u32 v{vT+3}, s{sT0}, v{vT+2}
    s_xor_b32 s{sT1}, s{sW}, 1
    s_mul_i32 s{sT1}, s{sT1}, {TABW}
    v_add_u32 v{vT+4}, s{sT1}, v{vT+2}
    s_lshl_b32 s{sT0}, s{sCH}, 12
    s_lshl_b32 s{sT1}, s{sHALF}, 11
    s_add_u32 s{sT0}, s{sT0}, s{sT1}
    s_add_u32 s{sT0}, s{sT0}, {YT}
    v_lshlrev_b32 v{vT+5}, 5, v{vT}
    v_lshl_add_u32 v{vT+5}, v{vT+1}, 3, v{vT+5}
    s_cmp_eq_u32 s{sHALF}, 0
    s_cbranch_scc1 C_H0
    """)
    for t in range(4): A(f"ds_write_b128 v{vT+3}, {vr(vY+4*t,4)} offset:{1024*t}")
    for i in range(16): A(f"v_mov_b32 v{vY+i}, v{vY+16+i}")
    A("s_branch C_HJ\nC_H0:\ns_nop 7")
    for t in range(4): A(f"ds_write_b128 v{vT+3}, {vr(vY+16+4*t,4)} offset:{1024*t}")
    A("C_HJ:\ns_waitcnt lgkmcnt(0)\ns_barrier")
    for t in range(4): A(f"ds_read_b128 {vr(vAF+4*t,4)}, v{vT+4} offset:{1024*t}")
    for t in range(4):
        A(f"s_waitcnt lgkmcnt({3-t})")
        A(f"v_pk_add_f32 {vr(vY+4*t,2)}, {vr(vY+4*t,2)}, {vr(vAF+4*t,2)}")
        A(f"v_pk_add_f32 {vr(vY+4*t+2,2)}, {vr(vY+4*t+2,2)}, {vr(vAF+4*t+2,2)}")
        A(f"v_cvt_pk_bf16_f32 v{vBF+2*t}, v{vY+4*t}, v{vY+4*t+1}")
        A(f"v_cvt_pk_bf16_f32 v{vBF+2*t+1}, v{vY+4*t+2}, v{vY+4*t+3}")
        A(f"buffer_store_dwordx2 {vr(vBF+2*t,2)}, v{vT+5}, s[{R_WS}:{R_WS+3}], s{sT0} offen offset:{512*t}")
    A("s_endpgm")

def k1():
    A = Asm()
    A("s_cmp_ge_u32 s2, 512\ns_cbranch_scc1 K1_EXIT")
    load_ptrs(A)
    A("s_cmp_ge_u32 s2, 256\ns_cbranch_scc1 K1_CONV")
    gemm_role(A)
    A("K1_CONV:")
    conv_role(A)
    A("K1_EXIT:\ns_endpgm")
    return A.text()

def k2():
    A = Asm(); vm = VM()
    sXCD,sJ,sRT,sCG,sW,sT0,sT1,sCT,sT2 = 3,4,5,6,7,8,9,10,11
    R_OUT = 52
    vLANE=1; vT=2
    vKO=12; vL16=13; vRM=14; vYO=15; vG=16; vOUT=17
    vKF=20
    vKB=36
    vD=44
    vY=76
    vOF=92
    vAD=124
    aWO=0; aPH=128
    OL=0; KL=32768
    A("s_cmp_ge_u32 s2, 256\ns_cbranch_scc1 K2_EXIT")
    A(f"""
    s_load_dwordx2 s[44:45], s[0:1], 112
    s_load_dwordx2 s[48:49], s[0:1], 128
    s_and_b32 s{sXCD}, s2, 7
    s_lshr_b32 s{sJ}, s2, 3
    s_and_b32 s{sRT}, s{sJ}, 7
    s_lshl_b32 s{sT0}, s{sXCD}, 3
    s_add_u32 s{sRT}, s{sRT}, s{sT0}
    s_lshr_b32 s{sCG}, s{sJ}, 3
    v_lshrrev_b32 v{vT}, 6, v0
    v_and_b32 v{vLANE}, 63, v0
    v_readfirstlane_b32 s{sW}, v{vT}
    v_lshrrev_b32 v{vT}, 3, v{vLANE}
    v_and_b32 v{vT+1}, 7, v{vLANE}
    v_xor_b32 v{vT+1}, v{vT+1}, v{vT}
    v_lshlrev_b32 v{vT+1}, 4, v{vT+1}
    v_lshl_add_u32 v{vKO}, v{vT}, 7, v{vT+1}
    v_lshlrev_b32 v{vL16}, 4, v{vLANE}
    s_lshl_b32 s{sCT}, s{sCG}, 2
    s_add_u32 s{sCT}, s{sCT}, s{sW}
    s_mul_i32 s{sT0}, s{sW}, {8*KVH}
    s_add_u32 s12, s{sT0}, {KL}
    s_add_u32 s13, s{sT0}, {KV}
    s_lshl_b32 s14, s{sRT}, 5
    s_lshl_b32 s{sT0}, s{sW}, 3
    s_add_u32 s14, s14, s{sT0}
    s_lshl_b32 s14, s14, 11
    s_add_u32 s14, s14, {PHIQ}
    s_lshl_b32 s15, s{sCT}, 15
    s_add_u32 s15, s15, {WOP}                 ; wo frags off
    s_waitcnt lgkmcnt(0)
    """)
    srd(A, R_WS, P_WS, WS_BYTES); srd(A, R_OUT, P_OUT, 2<<20)
    WS = f"s[{R_WS}:{R_WS+3}]"
    npiece=0
    def kvp(n):
        if n%4==0:
            A(f"s_add_u32 m0, s12, {1024*n}\ns_add_u32 s{sT0}, s13, {1024*n}")
        A(f"buffer_load_dwordx4 v{vKO}, {WS}, s{sT0} offen offset:{1024*(n%4)} lds"); vm.issue(("kv",n))
    for h in range(8):
        needp = -(-(h+1)*KVH//1024)
        while npiece<needp: kvp(npiece); npiece+=1
        if h%2==0: A(f"s_add_u32 s{sT1}, s14, {2048*h}")
        for f in range(2):
            A(f"buffer_load_dwordx4 {ar(aPH+8*h+4*f,4)}, v{vL16}, {WS}, s{sT1} offen offset:{2048*(h%2)+1024*f}"); vm.issue(("ph",h))
    nwo=0
    def wo(n):
        if n%4==0: A(f"s_add_u32 s{sT2}, s15, {1024*n}")
        A(f"buffer_load_dwordx4 {ar(aWO+4*n,4)}, v{vL16}, {WS}, s{sT2} offen offset:{1024*(n%4)}"); vm.issue(("wo",n))
    for n in range(8): wo(n)
    nwo=8
    A(f"""
    v_and_b32 v{vT}, 31, v{vLANE}
    v_min_u32 v{vRM}, 16, v{vT}
    v_lshrrev_b32 v{vT+1}, 5, v{vLANE}        ; hh
    v_lshlrev_b32 v{vYO}, 14, v{vT+1}
    v_lshl_add_u32 v{vYO}, v{vT}, 1, v{vYO}
    s_lshl_b32 s18, s{sCT}, 17
    s_lshl_b32 s19, s{sRT}, 6
    s_add_u32 s18, s18, s19
    s_add_u32 s18, s18, {YT}
    v_lshlrev_b32 v{vG}, 2, v{vT}
    s_lshl_b32 s19, s{sRT}, 7
    s_add_u32 s19, s19, {GOFF}
    v_lshlrev_b32 v{vOUT}, 10, v{vT}
    v_lshl_add_u32 v{vOUT}, v{vT+1}, 4, v{vOUT}
    s_lshl_b32 s20, s{sRT}, 15
    s_lshl_b32 s21, s{sCT}, 6
    s_add_u32 s20, s20, s21
    v_lshlrev_b32 v{vT+2}, 2, v{vT+1}         ; 4h'
    s_lshl_b32 s21, s{sW}, 13
    v_add_u32 v{vT+6}, s21, v{vL16}
    """)
    for h in range(8):
        D = vD+16*(h&1)
        A(f"""
        v_add_u32 v{vT+3}, {h}, v{vRM}
        v_and_b32 v{vT+3}, 7, v{vT+3}
        v_xor_b32 v{vT+3}, v{vT+3}, v{vT+2}
        v_lshlrev_b32 v{vT+3}, 4, v{vT+3}
        v_lshl_add_u32 v{vT+3}, v{vRM}, 7, v{vT+3}
        v_add_u32 v{vAD}, s12, v{vT+3}
        v_xor_b32 v{vAD+1}, 16, v{vAD}
        v_xor_b32 v{vAD+2}, 32, v{vAD}
        v_xor_b32 v{vAD+3}, 48, v{vAD}
        """)
        vm.wait(A, ("ph",h))
        for i in range(4): A(f"ds_read_b128 {vr(vKF+4*i,4)}, v{vAD+i} offset:{KVH*h}")
        for n in range(3): wo(nwo); nwo+=1
        for r in (2*h, 2*h+1):
            A(f"s_add_u32 s22, s18, {(8*(r>>2)+(r&3))*4096}")
            A(f"buffer_load_ushort v{vY+r}, v{vYO}, {WS}, s22 offen"); vm.issue(("y",r))
        for i in range(4):
            A(f"s_waitcnt lgkmcnt({3-i})")
            A(f"v_cvt_pk_bf16_f32 v{vKB+2*i}, v{vKF+4*i}, v{vKF+4*i+1}")
            A(f"v_cvt_pk_bf16_f32 v{vKB+2*i+1}, v{vKF+4*i+2}, v{vKF+4*i+3}")
        A(f"v_mfma_f32_32x32x16_bf16 {vr(D,16)}, {vr(vKB,4)}, {ar(aPH+8*h,4)}, 0")
        A(f"v_mfma_f32_32x32x16_bf16 {vr(D,16)}, {vr(vKB+4,4)}, {ar(aPH+8*h+4,4)}, {vr(D,16)}")
        A(f"v_add_f32 v{D+8}, {hex(f2u(1e-6))}, v{D+8}")
        A(f"v_rcp_f32 v{D+8}, v{D+8}")
        for i in range(0,8,2): A(f"v_pk_mul_f32 {vr(D+i,2)}, {vr(D+i,2)}, {vr(D+8,2)} op_sel_hi:[1,0]")
        for i in range(4): A(f"v_cvt_pk_bf16_f32 v{D+12+i}, v{D+2*i}, v{D+2*i+1}")
        A(f"ds_write_b128 v{vT+6}, {vr(D+12,4)} offset:{OL+1024*h}")
    assert nwo==32
    A(f"buffer_load_dword v{vG}, v{vG}, {WS}, s19 offen"); vm.issue("g")
    A("s_waitcnt lgkmcnt(0)\ns_barrier")
    for n in range(8): A(f"ds_read_b128 {vr(vOF+4*n,4)}, v{vL16} offset:{OL+1024*n}")
    for n in range(32):
        if ("wo",n) in vm.q: vm.wait(A, ("wo",n))
        A(f"s_waitcnt lgkmcnt({min(7,31-n)})")
        A(f"v_mfma_f32_32x32x16_bf16 {vr(vD,16)}, {ar(aWO+4*n,4)}, {vr(vOF+4*(n%8),4)}, {'0' if n==0 else vr(vD,16)}")
        if n+8<32: A(f"ds_read_b128 {vr(vOF+4*(n%8),4)}, v{vL16} offset:{OL+1024*(n+8)}")
    vm.waitall(A)
    A(f"v_sub_f32 v{vT}, 1.0, v{vG}")
    for r in range(16):
        A(f"v_lshlrev_b32 v{vY+r}, 16, v{vY+r}")
        A(f"v_mul_f32 v{vY+r}, v{vT}, v{vY+r}")
    for r in range(16): A(f"v_fma_f32 v{vY+r}, v{vG}, v{vD+r}, v{vY+r}")
    for q in range(8): A(f"v_cvt_pk_bf16_f32 v{vKF+q}, v{vY+2*q}, v{vY+2*q+1}")
    for k in (0,2):
        A(f"v_permlane32_swap_b32 v{vKF+2*k}, v{vKF+2*k+2}")
        A(f"v_permlane32_swap_b32 v{vKF+2*k+1}, v{vKF+2*k+3}")
        A(f"buffer_store_dwordx4 {vr(vKF+2*k,4)}, v{vOUT}, s[{R_OUT}:{R_OUT+3}], s20 offen offset:{16*k}")
    A("K2_EXIT:\ns_endpgm")
    return A.text()

def kd(name, vgpr, accum, sgpr=96):
    return f""".section .rodata,"a"
.p2align 6
.amdhsa_kernel {name}
  .amdhsa_next_free_vgpr {vgpr}
  .amdhsa_next_free_sgpr {sgpr}
  .amdhsa_accum_offset {accum}
  .amdhsa_group_segment_fixed_size 0
  .amdhsa_kernarg_size 136
  .amdhsa_user_sgpr_count 2
  .amdhsa_user_sgpr_kernarg_segment_ptr 1
  .amdhsa_system_sgpr_workgroup_id_x 1
.end_amdhsa_kernel
"""
def main(path):
    ref = open(f"cdna_kernels/{NAME}.s.ref").read().split("\n")
    head = [l for l in ref if l.startswith(";") and "@launch" not in l and "Override" not in l and "grid=ceil" not in l]
    s = "\n".join(head)+"\n"
    s += "; generated by dev/gen.py (hand-written generator)\n"
    s += "; @launch kernel=gm_phase1_kernel grid=(512,1,1) block=(256,1,1) lds=81920\n"
    s += f"; @launch kernel=gm_phase2_kernel grid=(256,1,1) block=(256,1,1) lds={32768+4*8*KVH}\n"
    s += '.amdgcn_target "amdgcn-amd-amdhsa--gfx950"\n'
    for nm, body, v, acc in (("gm_phase1_kernel", k1(), 256, 256), ("gm_phase2_kernel", k2(), 320, 128)):
        s += f".text\n.globl {nm}\n.p2align 8\n.type {nm},@function\n{nm}:\n{body}" + kd(nm, v, acc)
    open(path,"w").write(s)
if __name__=="__main__":
    main(sys.argv[1] if len(sys.argv)>1 else f"cdna_kernels/{NAME}.s")
```
